```python
import torch

def _softmax(x, axis=-1):
    return torch.softmax(x, dim=axis)
def _gelu(x):
    return torch.nn.functional.gelu(x, approximate="tanh")
def _silu(x):
    return torch.nn.functional.silu(x)
def _sigmoid(x):
    return torch.sigmoid(x)
def _layernorm(x, axis=-1, eps=1e-5):
    m = x.mean(dim=axis, keepdim=True)
    v = x.var(dim=axis, keepdim=True, unbiased=False)
    return (x - m) / torch.sqrt(v + eps)
def _scatter_add(tgt, idx, src, axis=0):
    return tgt.clone().index_add_(axis, idx, src)
def _segment_sum(src, seg, n):
    out = torch.zeros((n,) + src.shape[1:], dtype=src.dtype)
    return out.index_add_(0, seg, src)
def _pad(x, pw):
    flat = tuple(v for pair in reversed(pw) for v in pair)
    return torch.nn.functional.pad(x, flat)

kernel_name = 'recurrent_scan__gqa_block_cached__glu_gated_swiglu__decode'

def setup_inputs():

    _w = (lambda a: (lambda t: t.to(torch.bfloat16) if t.is_floating_point() else t)(torch.as_tensor(a)))
    def _A_setup():
        B, Sq, D = 1, 1, 1024
        Hq, Hkv, Sk, Dh = 32, 4, 65536, 128
        assert Hq % Hkv == 0, (Hq, Hkv)
        return {
            "x": _w((lambda *s: torch.randn(*s, dtype=torch.bfloat16) * 0.4)(B, Sq, D)),
            "k_cache": _w((lambda *s: torch.randn(*s, dtype=torch.bfloat16) * 1.6)(B, Hkv, Sk, Dh)),
            "v_cache": _w((lambda *s: torch.randn(*s, dtype=torch.bfloat16) * 1.6)(B, Hkv, Sk, Dh)),
            "wq": _w((lambda *s: torch.randn(*s, dtype=torch.bfloat16) * 1.6)(D, Hq * Dh) * (D ** -0.5)),
            "wo": _w((lambda *s: torch.randn(*s, dtype=torch.bfloat16) * 1.6)(Hq * Dh, D) * ((Hq * Dh) ** -0.5)),
        }
    _A_in = _A_setup()

    def _B_setup():
        B, S, D, F = 1, 1, 1024, 3584
        return {
            "x": _w((lambda *s: torch.randn(*s, dtype=torch.bfloat16) * 0.4)(B, S, D)),
            "w1": _w((lambda *s: torch.randn(*s, dtype=torch.bfloat16) * 1.6)(D, F) * (2.0 / D) ** 0.5),
            "w3": _w((lambda *s: torch.randn(*s, dtype=torch.bfloat16) * 1.6)(D, F) * (2.0 / D) ** 0.5),
            "w2": _w((lambda *s: torch.randn(*s, dtype=torch.bfloat16) * 1.6)(F, D) * (2.0 / F) ** 0.5),
        }
    _B_in = _B_setup()

    return {
        "A_x": _A_in["x"],
        "A_k_cache": _A_in["k_cache"],
        "A_v_cache": _A_in["v_cache"],
        "A_wq": _A_in["wq"],
        "A_wo": _A_in["wo"],
        "B_x": _B_in["x"],
        "B_w1": _B_in["w1"],
        "B_w3": _B_in["w3"],
        "B_w2": _B_in["w2"],
    }

def reference(A_x, A_k_cache, A_v_cache, A_wq, A_wo, B_x, B_w1, B_w3, B_w2):
    def _A_ref(x, k_cache, v_cache, wq, wo):
        B, Sq, D = x.shape
        Hq, Dh = 32, 128
        Hkv = k_cache.shape[1]
        rep = Hq // Hkv
        q = (lambda x, *d: x.permute(*d))((x @ wq).reshape(B, Sq, Hq, Dh), 0, 2, 1, 3)
        k = (lambda x, n, axis: torch.repeat_interleave(x, n, dim=axis))(k_cache, rep, axis=1)
        v = (lambda x, n, axis: torch.repeat_interleave(x, n, dim=axis))(v_cache, rep, axis=1)
        scores = torch.einsum("bhqd,bhkd->bhqk", q, k) * (Dh ** -0.5)
        p = _softmax(scores, axis=-1)
        o = torch.einsum("bhqk,bhkd->bhqd", p, v)
        return (lambda x, *d: x.permute(*d))(o, 0, 2, 1, 3).reshape(B, Sq, Hq * Dh) @ wo

    def _B_ref(x, w1, w3, w2):
        gate = torch.einsum("bsd,df->bsf", x, w1)
        up = torch.einsum("bsd,df->bsf", x, w3)
        h = _silu(gate) * up
        out = torch.einsum("bsf,fd->bsd", h, w2)
        return out

    x = A_x
    xn = _layernorm(x, axis=-1)
    s = _A_ref(xn, A_k_cache, A_v_cache, A_wq, A_wo)
    g = _silu(_B_ref(xn, B_w1, B_w3, B_w2))
    return x + s * g
```

```python
import sys, os, glob, json
KN = "recurrent_scan__gqa_block_cached__glu_gated_swiglu__decode_kernel"

def gen(name, W=8, depth=32, G=4096, probe="load", prio=3, nprobe=24, pattern="contig", kpat="contig", vpat="contig", think=0):
    per_wave = (64 << 20) // (256 * W)
    n = per_wave // 1024
    L = []; a = L.append
    a(f"; @launch grid=(256,1,1) block=({64*(W+1)},1,1) lds=98304")
    a('.amdgcn_target "amdgcn-amd-amdhsa--gfx950"')
    a(".text"); a(f".globl {KN}"); a(".p2align 8"); a(f".type {KN},@function"); a(f"{KN}:")
    a("s_cmp_ge_u32 s2, 256"); a("s_cbranch_scc1 L_end")
    a("s_memrealtime s[20:21]")
    a("s_load_dwordx4 s[4:7], s[0:1], 8")
    a("s_load_dwordx2 s[16:17], s[0:1], 88")
    a("v_lshrrev_b32 v1, 6, v0"); a("v_and_b32 v2, 63, v0")
    a("v_readfirstlane_b32 s3, v1")
    a("s_waitcnt lgkmcnt(0)")
    a(f"s_cmp_eq_u32 s3, {W}")
    a("s_cbranch_scc1 L_probe")
    a("s_lshl_b32 s18, s2, %d" % (W.bit_length()-1)); a("s_add_u32 s18, s18, s3")
    a("s_lshr_b32 s28, s2, 6"); a("s_lshl_b32 s28, s28, 24")
    a(f"s_and_b32 s19, s18, {64*W-1}"); a(f"s_mul_i32 s19, s19, {G}"); a("s_add_u32 s19, s19, s28")
    a("v_lshlrev_b32 v3, 4, v2")
    a("v_and_b32 v4, 7, v2"); a("v_lshlrev_b32 v4, 8, v4"); a("v_bfe_u32 v6, v2, 3, 1"); a("v_lshl_add_u32 v4, v6, 6, v4")
    a("v_lshrrev_b32 v6, 4, v2"); a("v_lshl_add_u32 v4, v6, 4, v4")
    a("v_and_b32 v5, 15, v2"); a("v_lshlrev_b32 v5, 4, v5"); a("v_lshl_add_u32 v5, v6, 10, v5")
    a("v_and_b32 v12, 3, v2"); a("v_lshlrev_b32 v12, 10, v12"); a("v_bfe_u32 v7, v2, 2, 1"); a("v_lshl_add_u32 v12, v7, 8, v12")
    a("v_bfe_u32 v7, v2, 3, 1"); a("v_lshl_add_u32 v12, v7, 6, v12"); a("v_lshl_add_u32 v12, v6, 4, v12")
    a("v_and_b32 v13, 3, v2"); a("v_lshlrev_b32 v13, 9, v13"); a("v_bfe_u32 v7, v2, 2, 1"); a("v_lshl_add_u32 v13, v7, 8, v13")
    a("v_bfe_u32 v7, v2, 3, 1"); a("v_lshl_add_u32 v13, v7, 6, v13"); a("v_lshl_add_u32 v13, v6, 4, v13")
    a("v_and_b32 v14, 15, v2"); a("v_lshlrev_b32 v14, 4, v14"); a("v_bfe_u32 v7, v2, 4, 1"); a("v_lshl_add_u32 v14, v7, 8, v14")
    a("v_bfe_u32 v7, v2, 5, 1"); a("v_lshl_add_u32 v14, v7, 11, v14")
    a("v_mov_b32 v7, 0")
    a("s_mov_b32 s8, s4"); a("s_mov_b32 s9, s5"); a("s_mov_b32 s10, 0x4000000"); a("s_mov_b32 s11, 0x20000")
    a("s_mov_b32 s12, s6"); a("s_mov_b32 s13, s7"); a("s_mov_b32 s14, 0x4000000"); a("s_mov_b32 s15, 0x20000")
    def load(i, srd, slot):
        o = i * 1024
        o = (o // G) * G * 64 * W + o % G
        hi, lo = (o // 4096) * 4096, o % 4096
        pat = kpat if srd == "s[8:11]" else vpat
        vr = "v3"
        if pat == "k128": vr = "v4"; lo = (0, 128, 2048, 2176)[i % 4]
        if pat == "v256": vr = "v5"; lo = 256 * (i % 4)
        if pat == "k128s": vr = "v12"; lo = (0, 128, 512, 640)[i % 4]
        if pat == "k128p": vr = "v13"; lo = (0, 128, 2048, 2176)[i % 4]
        if pat == "v512": vr = "v14"; lo = 512 * (i % 4)
        a(f"s_add_u32 s22, s19, {hi}")
        r = 16 + 4 * slot
        a(f"buffer_load_dwordx4 v[{r}:{r+3}], {vr}, {srd}, s22 offen offset:{lo} nt")
        if think and i % 8 == 7:
            for q in range(think): a(f"v_add_f32 v7, v7, v7")
    seq = [("s[8:11]", i) for i in range(n)] + [("s[12:15]", i) for i in range(n)]
    st = 30
    for j, (srd, i) in enumerate(seq):
        if j >= depth:
            a(f"s_waitcnt vmcnt({depth-1})")
        if j == depth or (j > depth and (j - depth) % 8 == 0 and st < 60):
            a(f"s_memrealtime s[{st}:{st+1}]"); st += 2
        load(i, srd, j % depth)
    a("s_waitcnt vmcnt(0)")
    a("s_memrealtime s[24:25]")
    a("s_waitcnt lgkmcnt(0)")
    a("s_lshl_b32 s18, s18, 8")
    a("v_mov_b32 v1, s18")
    a("v_cmp_eq_u32 vcc, 0, v2"); a("s_and_saveexec_b64 s[26:27], vcc")
    a("v_mov_b32 v4, s20"); a("v_mov_b32 v5, s21"); a("v_mov_b32 v6, s24"); a("v_mov_b32 v7, s25")
    a("global_store_dwordx4 v1, v[4:7], s[16:17]")
    k = 16
    for s in range(30, st, 2):
        a(f"v_mov_b32 v4, s{s}"); a(f"v_mov_b32 v5, s{s+1}")
        a(f"global_store_dwordx2 v1, v[4:5], s[16:17] offset:{k}"); a("s_nop 1"); k += 8
    a("s_waitcnt vmcnt(0)")
    a("s_endpgm")
    a("L_probe:")
    if prio: a(f"s_setprio {prio}")
    a("s_lshl_b32 s18, s2, 9"); a("s_add_u32 s18, s18, 0x100000")
    a("s_lshl_b32 s19, s2, 12"); a("s_add_u32 s19, s19, 0x200000")
    a("v_mov_b32 v8, s18")
    a("v_lshlrev_b32 v9, 2, v2"); a("v_add_u32 v9, s19, v9")
    a("v_mov_b32 v10, 1")
    a("s_mov_b32 s29, 0")
    a("L_ploop:")
    a("s_memrealtime s[30:31]")
    a("s_waitcnt lgkmcnt(0)")
    if probe == "load":
        a("global_load_dword v11, v9, s[16:17] sc1")
    elif probe == "store":
        a("global_store_dword v9, v10, s[16:17] sc1")
    elif probe == "atomic":
        a("s_mov_b64 s[34:35], exec"); a("s_mov_b64 exec, 1")
        a("global_atomic_add v11, v9, v10, s[16:17] sc0 sc1")
        a("s_mov_b64 exec, s[34:35]")
    a("s_waitcnt vmcnt(0)")
    a("s_memrealtime s[32:33]")
    a("s_waitcnt lgkmcnt(0)")
    a("v_mov_b32 v4, s30"); a("v_mov_b32 v5, s31"); a("v_mov_b32 v6, s32"); a("v_mov_b32 v7, s33")
    a("s_lshl_b32 s36, s29, 4"); a("v_mov_b32 v12, s36")
    a("ds_write_b128 v12, v[4:7]")
    a("s_add_u32 s29, s29, 1")
    a(f"s_cmp_lt_u32 s29, {nprobe}")
    a("s_cbranch_scc1 L_ploop")
    a("s_waitcnt lgkmcnt(0)")
    a("v_lshlrev_b32 v12, 4, v2")
    a("ds_read_b128 v[4:7], v12")
    a("s_waitcnt lgkmcnt(0)")
    a("v_add_u32 v12, v8, v12")
    a(f"v_cmp_gt_u32 vcc, {nprobe}, v2"); a("s_and_saveexec_b64 s[26:27], vcc")
    a("global_store_dwordx4 v12, v[4:7], s[16:17]")
    a("s_waitcnt vmcnt(0)")
    a("L_end:"); a("s_endpgm")
    nv = max(16 + 4 * depth, 24)
    a('.section .rodata,"a"'); a(".p2align 6"); a(f".amdhsa_kernel {KN}")
    a(f"  .amdhsa_next_free_vgpr {nv}"); a("  .amdhsa_next_free_sgpr 70"); a(f"  .amdhsa_accum_offset {(nv+3)//4*4}")
    a("  .amdhsa_group_segment_fixed_size 0"); a("  .amdhsa_kernarg_size 96"); a("  .amdhsa_user_sgpr_count 2")
    a("  .amdhsa_user_sgpr_kernarg_segment_ptr 1"); a("  .amdhsa_system_sgpr_workgroup_id_x 1"); a(".end_amdhsa_kernel")
    open(name, "w").write("\n".join(L) + "\n")

if __name__ == "__main__":
    od = "genp"; os.makedirs(od, exist_ok=True)
    for f in glob.glob(od + "/*"): os.remove(f)
    names = []
    for depth in (3, 4, 5):
        for kp, vp in (("contig", "contig"), ("k128", "contig"), ("k128", "v256"), ("k128s", "contig"), ("k128p", "v512")):
            nm = f"{od}/p_d{depth}_{kp}_{vp}.s"
            gen(nm, depth=depth, probe="load", kpat=kp, vpat=vp, nprobe=1); names.append(nm)
    print(json.dumps([n.replace("code/","") for n in names]))
```
